```python
import torch

def _softmax(x, axis=-1):
    return torch.softmax(x, dim=axis)
def _gelu(x):
    return torch.nn.functional.gelu(x, approximate="tanh")
def _silu(x):
    return torch.nn.functional.silu(x)
def _sigmoid(x):
    return torch.sigmoid(x)
def _layernorm(x, axis=-1, eps=1e-5):
    m = x.mean(dim=axis, keepdim=True)
    v = x.var(dim=axis, keepdim=True, unbiased=False)
    return (x - m) / torch.sqrt(v + eps)
def _scatter_add(tgt, idx, src, axis=0):
    return tgt.clone().index_add_(axis, idx, src)
def _segment_sum(src, seg, n):
    out = torch.zeros((n,) + src.shape[1:], dtype=src.dtype)
    return out.index_add_(0, seg, src)
def _pad(x, pw):
    flat = tuple(v for pair in reversed(pw) for v in pair)
    return torch.nn.functional.pad(x, flat)

kernel_name = 'sequential_preLN__linear_kernel_hedgehog__dense_activation_relu__prompt'

def setup_inputs():

    _w = (lambda a: (lambda t: t.to(torch.bfloat16) if t.is_floating_point() else t)(torch.as_tensor(a)))
    def _A_setup():
        B, S, D, H = 1, 2048, 1024, 32
        Dh = D // H
        return {
            "x": _w((lambda *s: torch.randn(*s, dtype=torch.bfloat16) * 0.05)(B, S, D)),
            "wqkv": _w((lambda *s: torch.randn(*s, dtype=torch.bfloat16) * 0.2)(D, 3 * D)),
            "w_phi": _w((lambda *s: torch.randn(*s, dtype=torch.bfloat16) * 0.2)(H, Dh, Dh) * (Dh ** -0.5)),
            "wo": _w((lambda *s: torch.randn(*s, dtype=torch.bfloat16) * 0.05)(D, D)),
        }
    _A_in = _A_setup()

    def _B_setup():
        B, S, D, Dff = 1, 2048, 1024, 3584
        return {
            "x": _w((lambda *s: torch.randn(*s, dtype=torch.bfloat16) * 0.05)(B, S, D)),
            "w1": _w((lambda *s: torch.randn(*s, dtype=torch.bfloat16) * 0.05)(D, Dff)),
            "w2": _w((lambda *s: torch.randn(*s, dtype=torch.bfloat16) * 0.05)(Dff, D)),
        }
    _B_in = _B_setup()

    return {
        "A_x": _A_in["x"],
        "A_wqkv": _A_in["wqkv"],
        "A_w_phi": _A_in["w_phi"],
        "A_wo": _A_in["wo"],
        "B_x": _B_in["x"],
        "B_w1": _B_in["w1"],
        "B_w2": _B_in["w2"],
    }

def reference(A_x, A_wqkv, A_w_phi, A_wo, B_x, B_w1, B_w2):
    def _A_ref(x, wqkv, w_phi, wo):
        B, S, D = x.shape
        H = 32; Dh = D // H
        qkv = (lambda x, *d: x.permute(*d))((x @ wqkv).reshape(B, S, 3, H, Dh), 2, 0, 3, 1, 4)
        q, k, v = qkv[0], qkv[1], qkv[2]
        pq = torch.einsum("bhsd,hdf->bhsf", q, w_phi)
        pk = torch.einsum("bhsd,hdf->bhsf", k, w_phi)
        phi_q = torch.concatenate([_softmax(pq, axis=-1), _softmax(-pq, axis=-1)], axis=-1)
        phi_k = torch.concatenate([_softmax(pk, axis=-1), _softmax(-pk, axis=-1)], axis=-1)
        kv = torch.einsum("bhsf,bhsd->bhfd", phi_k, v)
        z  = torch.einsum("bhsf->bhf", phi_k)
        num = torch.einsum("bhqf,bhfd->bhqd", phi_q, kv)
        den = torch.einsum("bhqf,bhf->bhq", phi_q, z)[..., None] + 1e-6
        o = num / den
        return (lambda x, *d: x.permute(*d))(o, 0, 2, 1, 3).reshape(B, S, D) @ wo

    def _B_ref(x, w1, w2):
        h = torch.einsum("bsd,df->bsf", x, w1)
        zero = torch.zeros_like(h)
        h = torch.maximum(h, zero)
        return torch.einsum("bsf,fd->bsd", h, w2)

    x = A_x
    h = x + _A_ref(_layernorm(x, axis=-1), A_wqkv, A_w_phi, A_wo)
    h2 = h + _B_ref(_layernorm(h, axis=-1), B_w1, B_w2)
    return h2
```

```python
import re

class Asm:
    def __init__(self):
        self.lines = []
        self.uid = 0
    def e(self, s):
        self.lines.append('    ' + s)
    def c(self, s):
        self.lines.append('    ; ' + s)
    def label(self, l):
        self.lines.append(l + ':')
    def raw(self, s):
        self.lines.append(s)
    def newlabel(self, base='L'):
        self.uid += 1
        return '%s_%d' % (base, self.uid)
    def text(self, hazards=True):
        L = fix_hazards(self.lines) if hazards else self.lines
        return '\n'.join(L) + '\n'

def vr(base, n=1):
    return 'v%d' % base if n == 1 else 'v[%d:%d]' % (base, base + n - 1)
def sr(base, n=1):
    return 's%d' % base if n == 1 else 's[%d:%d]' % (base, base + n - 1)

class RegAlloc:
    def __init__(self, start, limit):
        self.next = start
        self.limit = limit
        self.hi = start
    def alloc(self, n=1, align=1, name=None):
        b = (self.next + align - 1) // align * align
        self.next = b + n
        self.hi = max(self.hi, self.next)
        assert self.next <= self.limit, 'out of registers (%s) %d > %d' % (name, self.next, self.limit)
        return b
    def mark(self): return self.next
    def release(self, m): self.next = m

def kernel_header(a, name):
    a.raw('.globl %s' % name)
    a.raw('.p2align 8')
    a.raw('.type %s,@function' % name)
    a.label(name)

def kernel_desc(name, vgpr, sgpr=102, accum=None):
    if accum is None:
        accum = (vgpr + 3) // 4 * 4
    s = ['.p2align 6', '.amdhsa_kernel %s' % name,
         '  .amdhsa_next_free_vgpr %d' % vgpr,
         '  .amdhsa_next_free_sgpr %d' % sgpr,
         '  .amdhsa_accum_offset %d' % accum,
         '  .amdhsa_group_segment_fixed_size 0',
         '  .amdhsa_kernarg_size 80',
         '  .amdhsa_user_sgpr_count 2',
         '  .amdhsa_user_sgpr_kernarg_segment_ptr 1',
         '  .amdhsa_system_sgpr_workgroup_id_x 1',
         '.end_amdhsa_kernel']
    return '\n'.join(s) + '\n'

_REG = re.compile(r'^(-|abs\()?\s*([vs])(?:(\d+)|\[(\d+):(\d+)\])\)?$')
def _regs(op):
    op = op.strip()
    if op in ('vcc',): return {('s', 106), ('s', 107)}
    if op == 'exec': return {('s', 126), ('s', 127)}
    if op == 'm0': return {('s', 124)}
    m = _REG.match(op)
    if not m: return set()
    k = m.group(2)
    if m.group(3) is not None: return {(k, int(m.group(3)))}
    return {(k, i) for i in range(int(m.group(4)), int(m.group(5)) + 1)}

TRANS = ('v_exp_f32', 'v_log_f32', 'v_rcp_f32', 'v_rsq_f32', 'v_sqrt_f32', 'v_sin_f32', 'v_cos_f32')

class I:
    __slots__ = ('mn', 'w', 'r', 'kind', 'passes', 'srcc', 'dpp', 'ws', 'lds', 'wide', 'data')
def parse(line):
    s = line.split(';')[0].strip()
    if not s or s.endswith(':') or s.startswith('.'): return None
    parts = s.split(None, 1)
    mn = parts[0]
    rest = parts[1] if len(parts) > 1 else ''
    toks = [t.strip() for t in rest.split(',')]
    ops = []
    mods = ''
    for i, t in enumerate(toks):
        sp = t.split(None, 1)
        if sp:
            ops.append(sp[0])
            if len(sp) > 1: mods += ' ' + sp[1]
    x = I(); x.mn = mn; x.w = set(); x.r = set(); x.kind = 'other'; x.passes = 0; x.srcc = set(); x.dpp = False
    x.ws = 1; x.lds = False; x.wide = False; x.data = set()
    R = [_regs(o) for o in ops]
    if mn == 's_nop':
        x.kind = 'nop'; x.ws = int(ops[0], 0) + 1
    elif mn.startswith('v_mfma'):
        x.kind = 'mfma'; x.passes = 8 if '32x32x16' in mn else 4
        x.w = R[0]; x.r = R[1] | R[2] | R[3]; x.srcc = R[3]
    elif mn.startswith('v_cmp'):
        x.kind = 'valu'; x.w = R[0]; x.r = set().union(*R[1:])
    elif mn.startswith('v_readfirstlane') or mn.startswith('v_readlane'):
        x.kind = 'valu'; x.w = R[0]; x.r = set().union(*R[1:])
    elif mn.startswith('v_permlane') and 'swap' in mn:
        x.kind = 'valu'; x.w = R[0] | R[1]; x.r = R[0] | R[1]
    elif mn.startswith('v_'):
        x.kind = 'valu'; x.w = set(R[0]); x.r = set().union(*R[1:]) if len(R) > 1 else set()
        if '_co_' in mn and len(R) > 1:
            x.w |= R[1]; x.r = set().union(*R[2:])
        if mn.startswith('v_fmac') or mn.startswith('v_dot2c') or mn.startswith('v_writelane'): x.r |= R[0]
        if mn.startswith('v_cndmask') and len(ops) == 3: x.r |= _regs('vcc')
        if mn.startswith('v_cndmask') and mn.endswith('_e32'): x.r |= _regs('vcc')
        if 'dpp' in mn or 'row_' in rest or 'quad_perm' in rest: x.dpp = True
    elif mn.startswith('ds_read') or mn.startswith('ds_bpermute') or mn.startswith('ds_swizzle') or mn.startswith('ds_permute'):
        x.kind = 'ds'; x.w = R[0]; x.r = set().union(*R[1:])
    elif mn.startswith('ds_'):
        x.kind = 'ds'; x.r = set().union(*R)
    elif mn.startswith('buffer_load') or mn.startswith('global_load'):
        x.kind = 'vmem'
        if ' lds' in (' ' + mods) or mods.strip().endswith('lds') or '_lds_' in mn:
            x.lds = True; x.r = set().union(*R) | {('s', 124)}
        else:
            x.w = R[0]; x.r = set().union(*R[1:])
    elif mn.startswith('buffer_store') or mn.startswith('global_store') or mn.startswith('buffer_atomic') or mn.startswith('global_atomic'):
        x.kind = 'vmem'; x.r = set().union(*R)
        if 'x4' in mn or 'x3' in mn:
            x.wide = True
            x.data = R[0] if mn.startswith('buffer') else R[1]
        if 'atomic' in mn and 'sc0' in mods:
            x.w = R[0]
    elif mn.startswith('s_'):
        x.kind = 'salu'
        if mn.startswith('s_cmp') or mn.startswith('s_cbranch') or mn.startswith('s_branch') or mn.startswith('s_waitcnt') or mn in ('s_barrier', 's_endpgm', 's_setprio', 's_sleep') or mn.startswith('s_bitcmp'):
            x.r = set().union(*R) if R else set()
        else:
            x.w = R[0] if R else set(); x.r = set().union(*R[1:]) if len(R) > 1 else set()
            if 'saveexec' in mn: x.w |= _regs('exec')
    return x

def _need(p, c):
    n = 0
    pv = {r for r in p.w if r[0] == 'v'}
    ps = {r for r in p.w if r[0] == 's'}
    if p.kind == 'valu':
        if pv:
            if c.kind == 'mfma' and (pv & c.r): n = max(n, 2)
            if c.kind == 'valu' and (pv & c.r):
                if c.mn.startswith('v_permlane'): n = max(n, 2)
                if c.dpp: n = max(n, 2)
                if c.mn.startswith('v_readfirstlane') or c.mn.startswith('v_readlane'): n = max(n, 1)
                if p.mn.split('_e')[0] in TRANS or any(p.mn.startswith(t) for t in TRANS): n = max(n, 1)
                if 'sdwa' in p.mn: n = max(n, 1)
        if ps:
            if c.kind == 'valu' and (ps & c.r): n = max(n, 4 if (c.mn.startswith('v_readlane') or c.mn.startswith('v_writelane')) else 2)
            if c.kind == 'vmem' and (ps & c.r): n = max(n, 5)
            if c.kind == 'salu' and (ps & c.r): n = max(n, 3)
            if (('s', 126) in ps) and c.kind in ('mfma',): n = max(n, 4)
            if (('s', 126) in ps) and c.dpp: n = max(n, 5)
    if p.kind == 'mfma':
        big = p.passes == 8
        if c.kind == 'mfma':
            if p.w & c.srcc:
                if not (p.w == c.srcc and p.passes == c.passes): n = max(n, 10 if big else 6)
            if p.w & (c.r - c.srcc): n = max(n, 12 if big else 8)
            if (p.w & c.w) and not (p.w == c.w and p.passes == c.passes): n = max(n, 10 if big else 6)
        elif c.kind in ('valu', 'ds', 'vmem'):
            if p.w & (c.r | c.w): n = max(n, 12 if big else 8)
            if c.kind == 'valu' and (p.srcc & c.w): n = max(n, 7 if big else 3)
    if p.kind == 'salu':
        if ('s', 124) in p.w and c.kind == 'vmem' and c.lds: n = max(n, 1)
        if ('s', 124) in p.w and c.kind == 'valu' and ('s', 124) in c.r: n = max(n, 4)
    if p.kind == 'vmem' and p.wide:
        if c.kind == 'valu' and (p.data & c.w): n = max(n, 2)
        elif c.kind != 'valu' and (p.data & c.w): n = max(n, 1)
    return n

def fix_hazards(lines):
    out = []
    hist = []
    pos = 0
    for ln in lines:
        x = parse(ln)
        if x is None:
            out.append(ln); continue
        need = 0
        for (p, ppos) in hist[-24:]:
            d = pos - ppos
            n = _need(p, x)
            if n > d: need = max(need, n - d)
        while need > 0:
            k = min(need, 16)
            out.append('    s_nop %d' % (k - 1))
            pos += k; need -= k
        out.append(ln)
        pos += x.ws
        hist.append((x, pos))
        if x.mn in ('s_endpgm',): hist = []
    return out
```

```python
from asmlib import *

S_A, S_B = 4, 8
S_X0, S_X1, S_X2, S_X3 = 12, 16, 20, 24
S_WAVE, S_TM, S_TN = 28, 29, 30
T0, T1, T2, T3, T4, T5 = 31, 32, 33, 34, 35, 36
S_STAGE, S_CNT, S_KA, S_KB, S_LW = 37, 38, 39, 40, 41
S_WM, S_WN = 42, 43
PTR = 44
P_X, P_WQKV, P_WPHI, P_WO, P_BX, P_W1, P_W2, P_OUT, P_DBG, P_WS = [PTR + 2 * i for i in range(10)]
S_FREE = 64

class LgkmQueue:
    def __init__(self, a):
        self.a = a; self.q = []
    def issue(self, tag): self.q.append(tag)
    def need(self, tags):
        pos = -1
        for i, t in enumerate(self.q):
            if t in tags: pos = i
        if pos < 0: return
        n = min(len(self.q) - pos - 1, 15)
        self.a.e('s_waitcnt lgkmcnt(%d)' % n)
        self.q = self.q[len(self.q) - n:] if n > 0 else []
    def drain(self):
        self.a.e('s_waitcnt lgkmcnt(0)'); self.q = []

def load_ptrs(a):
    a.e('s_load_dwordx16 s[%d:%d], s[0:1], 0' % (PTR, PTR + 15))
    a.e('s_load_dwordx4 s[%d:%d], s[0:1], 64' % (PTR + 16, PTR + 19))

def make_srd(a, sd, ptr, const_off, dyn, total):
    if dyn is None:
        if const_off:
            a.e('s_add_u32 s%d, s%d, %d' % (sd, ptr, const_off))
            a.e('s_addc_u32 s%d, s%d, 0' % (sd + 1, ptr + 1))
        else:
            a.e('s_mov_b32 s%d, s%d' % (sd, ptr))
            a.e('s_mov_b32 s%d, s%d' % (sd + 1, ptr + 1))
        a.e('s_mov_b32 s%d, %d' % (sd + 2, total))
    else:
        a.e('s_add_u32 s%d, s%d, s%d' % (sd, ptr, dyn))
        a.e('s_addc_u32 s%d, s%d, 0' % (sd + 1, ptr + 1))
        if const_off:
            a.e('s_add_u32 s%d, s%d, %d' % (sd, sd, const_off))
            a.e('s_addc_u32 s%d, s%d, 0' % (sd + 1, sd + 1))
        a.e('s_sub_u32 s%d, %d, s%d' % (sd + 2, total, dyn))
    a.e('s_mov_b32 s%d, 0x20000' % (sd + 3))

def tile_map(a, XM, XN, RM, RN):
    lx = XN.bit_length() - 1
    a.e('s_and_b32 s%d, s2, 7' % T0)
    a.e('s_lshr_b32 s%d, s2, 3' % T1)
    a.e('s_lshr_b32 s%d, s%d, %d' % (T2, T0, lx))
    a.e('s_and_b32 s%d, s%d, %d' % (T3, T0, XN - 1))
    a.e('s_mul_i32 s%d, s%d, %d' % (S_TM, T1, (1 << 16) // RN + 1))
    a.e('s_lshr_b32 s%d, s%d, 16' % (S_TM, S_TM))
    a.e('s_mul_i32 s%d, s%d, %d' % (S_TN, S_TM, RN))
    a.e('s_sub_u32 s%d, s%d, s%d' % (S_TN, T1, S_TN))
    a.e('s_mul_i32 s%d, s%d, %d' % (T2, T2, RM))
    a.e('s_add_u32 s%d, s%d, s%d' % (S_TM, S_TM, T2))
    a.e('s_mul_i32 s%d, s%d, %d' % (T3, T3, RN))
    a.e('s_add_u32 s%d, s%d, s%d' % (S_TN, S_TN, T3))

def wave_id(a):
    a.e('v_lshrrev_b32 v1, 6, v0')
    a.e('v_and_b32 v0, 63, v0')
    a.e('v_readfirstlane_b32 s%d, v1' % S_WAVE)

class Core:
    def __init__(self, a, name, BM, groups, NK, S, WM, WN, lda, ldb, krot=None):
        self.a, self.name = a, name
        self.BM, self.groups, self.NK, self.S, self.WM, self.WN = BM, groups, NK, S, WM, WN
        self.lda, self.ldb, self.krot = lda, ldb, krot
        self.A_BYTES = BM * 128
        off = self.A_BYTES
        self.goff = []
        for kind, cb in groups:
            self.goff.append(off)
            off += 8192 if kind == 'pair' else 4096
        self.STAGE = off
        self.WTM = BM // WM
        self.TM = self.WTM // 16
        nt = []
        for gi, (kind, cb) in enumerate(groups):
            for par in range(2 if kind == 'pair' else 1):
                if WN == 1:
                    for sub in range(2): nt.append((gi, par, sub))
                else:
                    nt.append((gi, par, None))
        self.nt = nt
        self.TN = len(nt)
        self.nA = BM // 32
        self.nB = sum(2 if k == 'pair' else 1 for k, _ in groups)
        self.PER = self.nA + self.nB

    def loader(self, tail=None):
        a, name = self.a, self.name
        S, NK, STAGE, lda, ldb = self.S, self.NK, self.STAGE, self.lda, self.ldb
        nA = self.nA
        a.e('s_sub_u32 s%d, s%d, 4' % (S_LW, S_WAVE))
        va = [4 + i for i in range(nA)]
        vb0 = 4 + nA
        vb = [vb0 + i for i in range(self.nB)]
        vp, vs = vb0 + self.nB, vb0 + self.nB + 1
        a.e('v_lshrrev_b32 v1, 3, v0')
        a.e('s_lshl_b32 s%d, s%d, 3' % (T0, S_LW))
        a.e('v_add_u32 v1, s%d, v1' % T0)
        a.e('s_mov_b32 s%d, %d' % (T0, lda))
        a.e('v_mul_lo_u32 v1, v1, s%d' % T0)
        a.e('v_bfe_u32 v2, v0, 4, 2')
        a.e('s_and_b32 s%d, s%d, 1' % (T1, S_LW))
        a.e('s_lshl_b32 s%d, s%d, 2' % (T2, T1))
        a.e('v_add_u32 v2, s%d, v2' % T2)
        a.e('v_and_b32 v3, 7, v0')
        a.e('v_xor_b32 v2, v2, v3')
        a.e('v_lshl_add_u32 v%d, v2, 4, v1' % va[0])
        for i in range(1, nA):
            a.e('v_add_u32 v%d, %d, v%d' % (va[i], i * 32 * lda, va[0]))
        kinds = {k for k, _ in self.groups}
        a.e('s_mov_b32 s%d, %d' % (T0, ldb))
        if 'pair' in kinds:
            a.e('v_lshrrev_b32 v1, 5, v0')
            a.e('v_lshlrev_b32 v1, 2, v1')
            a.e('v_bfe_u32 v2, v0, 2, 2')
            a.e('v_add_u32 v1, v1, v2')
            a.e('s_lshl_b32 s%d, s%d, 3' % (T2, S_LW))
            a.e('v_add_u32 v1, s%d, v1' % T2)
            a.e('v_mul_lo_u32 v1, v1, s%d' % T0)
            a.e('v_and_b32 v2, 3, v0')
            a.e('s_lshl_b32 s%d, s%d, 1' % (T2, T1))
            a.e('v_xor_b32 v2, s%d, v2' % T2)
            a.e('v_lshlrev_b32 v2, 4, v2')
            a.e('v_bfe_u32 v3, v0, 4, 1')
            a.e('v_lshl_add_u32 v2, v3, 6, v2')
            a.e('v_add_u32 v%d, v1, v2' % vp)
        if 'single' in kinds:
            a.e('v_lshrrev_b32 v1, 4, v0')
            a.e('v_lshlrev_b32 v1, 2, v1')
            a.e('v_bfe_u32 v2, v0, 2, 2')
            a.e('v_add_u32 v1, v1, v2')
            a.e('s_lshl_b32 s%d, s%d, 4' % (T2, S_LW))
            a.e('v_add_u32 v1, s%d, v1' % T2)
            a.e('v_mul_lo_u32 v1, v1, s%d' % T0)
            a.e('v_and_b32 v2, 3, v0')
            a.e('v_lshrrev_b32 v3, 5, v0')
            a.e('v_lshlrev_b32 v3, 1, v3')
            a.e('v_xor_b32 v2, v2, v3')
            a.e('v_lshl_add_u32 v%d, v2, 4, v1' % vs)
        plan = []
        for i in range(nA):
            plan.append((va[i], i * 4096, 'A'))
        idx = 0
        for gi, (kind, cb) in enumerate(self.groups):
            if kind == 'pair':
                for u in range(2):
                    a.e('v_add_u32 v%d, %d, v%d' % (vb[idx], u * 32 * ldb + cb, vp))
                    plan.append((vb[idx], self.goff[gi] + u * 4096, 'B')); idx += 1
            else:
                a.e('v_add_u32 v%d, %d, v%d' % (vb[idx], cb, vs))
                plan.append((vb[idx], self.goff[gi], 'B')); idx += 1
        if self.krot:
            a.e('s_lshl_b32 s%d, s%d, 7' % (S_KA, T5))
            a.e('s_mul_i32 s%d, s%d, %d' % (S_KB, T5, 64 * ldb))
        else:
            a.e('s_mov_b32 s%d, 0' % S_KA)
            a.e('s_mov_b32 s%d, 0' % S_KB)
        a.e('s_lshl_b32 s%d, s%d, 10' % (S_STAGE, S_LW))
        def issue():
            for v, off, w in plan:
                a.e('s_add_u32 m0, s%d, %d' % (S_STAGE, off))
                a.e('buffer_load_dwordx4 v%d, s[%d:%d], s%d offen lds' % (v, (S_A if w == 'A' else S_B), (S_A if w == 'A' else S_B) + 3, S_KA if w == 'A' else S_KB))
            a.e('s_add_u32 s%d, s%d, 128' % (S_KA, S_KA))
            a.e('s_add_u32 s%d, s%d, %d' % (S_KB, S_KB, 64 * ldb))
            if self.krot:
                a.e('s_cmp_eq_u32 s%d, %d' % (S_KA, NK * 128))
                a.e('s_cselect_b32 s%d, 0, s%d' % (S_KA, S_KA))
                a.e('s_cselect_b32 s%d, 0, s%d' % (S_KB, S_KB))
            a.e('s_add_u32 s%d, s%d, %d' % (S_STAGE, S_STAGE, STAGE))
            a.e('s_sub_u32 s%d, s%d, %d' % (T0, S_STAGE, S * STAGE))
            a.e('s_cmp_ge_u32 s%d, %d' % (S_STAGE, S * STAGE))
            a.e('s_cselect_b32 s%d, s%d, s%d' % (S_STAGE, T0, S_STAGE))
        for k in range(S - 1): issue()
        a.e('s_mov_b32 s%d, %d' % (S_CNT, NK - (S - 1)))
        a.label('%s_lloop' % name)
        a.e('s_waitcnt vmcnt(%d)' % ((S - 2) * self.PER))
        a.e('s_barrier')
        issue()
        a.e('s_sub_u32 s%d, s%d, 1' % (S_CNT, S_CNT))
        a.e('s_cmp_lg_u32 s%d, 0' % S_CNT)
        a.e('s_cbranch_scc1 %s_lloop' % name)
        for k in range(S - 1):
            a.e('s_waitcnt vmcnt(%d)' % ((S - 2 - k) * self.PER))
            a.e('s_barrier')
        if tail: tail()
        a.e('s_endpgm')

    def compute_setup(self, R):
        a = self.a
        S, STAGE, WN, TM, TN = self.S, self.STAGE, self.WN, self.TM, self.TN
        self.R = R
        self.acc = [[R.alloc(4, 4) for j in range(TN)] for i in range(TM)]
        self.frag0 = R.alloc(0, 4)
        self.fA = [[R.alloc(4, 4) for i in range(TM)] for s in range(2)]
        self.fB = [[R.alloc(4, 4) for j in range(TN)] for s in range(2)]
        self.frag_end = R.mark()
        self.vAa = [[R.alloc() for s in range(2)] for st in range(S)]
        t = [R.alloc() for _ in range(4)]
        lwn = WN.bit_length() - 1
        a.e('s_lshr_b32 s%d, s%d, %d' % (S_WM, S_WAVE, lwn))
        a.e('s_and_b32 s%d, s%d, %d' % (S_WN, S_WAVE, WN - 1))
        a.e('v_and_b32 v%d, 15, v0' % t[0])
        a.e('v_lshrrev_b32 v%d, 4, v0' % t[1])
        a.e('v_bfe_u32 v%d, v0, 1, 3' % t[2])
        a.e('v_xor_b32 v%d, v%d, v%d' % (t[2], t[2], t[1]))
        a.e('v_lshlrev_b32 v%d, 4, v%d' % (t[2], t[2]))
        a.e('v_lshl_add_u32 v%d, v%d, 7, v%d' % (t[2], t[0], t[2]))
        a.e('s_mul_i32 s%d, s%d, %d' % (T0, S_WM, self.WTM * 128))
        a.e('v_add_u32 v%d, s%d, v%d' % (self.vAa[0][0], T0, t[2]))
        a.e('v_xor_b32 v%d, 64, v%d' % (self.vAa[0][1], self.vAa[0][0]))
        for st in range(1, S):
            for s in range(2):
                a.e('v_add_u32 v%d, %d, v%d' % (self.vAa[st][s], st * STAGE, self.vAa[0][s]))
        keys = []
        for gi, par, sub in self.nt:
            k = (self.groups[gi][0], sub)
            if k not in keys: keys.append(k)
        self.vBb = {}
        for k in keys:
            kind, sub = k
            regs = [R.alloc() for st in range(S)]
            self.vBb[k] = regs
            a.e('v_bfe_u32 v%d, v0, 1, 1' % t[2])
            if sub is None:
                a.e('s_lshl_b32 s%d, s%d, 1' % (T0, S_WN))
                a.e('v_add_u32 v%d, s%d, v%d' % (t[2], T0, t[2]))
            elif sub:
                a.e('v_add_u32 v%d, 2, v%d' % (t[2], t[2]))
            a.e('v_and_b32 v%d, 1, v%d' % (t[3], t[1]))
            a.e('v_lshlrev_b32 v%d, 1, v%d' % (t[3], t[3]))
            a.e('v_xor_b32 v%d, v%d, v%d' % (t[2], t[2], t[3]))
            a.e('v_lshlrev_b32 v%d, 4, v%d' % (t[2], t[2]))
            a.e('v_bfe_u32 v%d, v0, 2, 2' % t[3])
            a.e('v_lshl_add_u32 v%d, v%d, 6, v%d' % (t[2], t[3], t[2]))
            a.e('v_lshl_add_u32 v%d, v%d, %d, v%d' % (t[2], t[1], 10 if kind == 'pair' else 9, t[2]))
            a.e('v_and_b32 v%d, 1, v0' % t[3])
            a.e('v_lshl_add_u32 v%d, v%d, 3, v%d' % (regs[0], t[3], t[2]))
            for st in range(1, S):
                a.e('v_add_u32 v%d, %d, v%d' % (regs[st], st * STAGE, regs[0]))
        for i in range(TM):
            for j in range(TN):
                for r in range(4):
                    a.e('v_mov_b32 v%d, 0' % (self.acc[i][j] + r))

    def _reads(self, slot, s, st):
        TM, TN = self.TM, self.TN
        seq = []
        ia = ib = 0
        while ia < TM or ib < TN:
            if ia < TM: seq.append(('A', ia)); ia += 1
            if ib < TN: seq.append(('B', ib)); ib += 1
        L = []
        for kind, idx in seq:
            if kind == 'A':
                L.append(('ds_read_b128 %s, v%d offset:%d' % (vr(self.fA[st][idx], 4), self.vAa[slot][s], idx * 2048), ('A', st, idx)))
            else:
                gi, par, sub = self.nt[idx]
                gk = self.groups[gi][0]
                b = self.vBb[(gk, sub)][slot]
                for h in range(2):
                    kq = 8 * s + h
                    off = self.goff[gi] + (kq * 512 + par * 256 if gk == 'pair' else kq * 256)
                    L.append(('ds_read_b64_tr_b16 %s, v%d offset:%d' % (vr(self.fB[st][idx] + 2 * h, 2), b, off), ('B', st, idx)))
        return L

    def _substep(self, st, nxt, after_first=None):
        a, Q = self.a, self.Q
        pairs = [(i, j) for i in range(self.TM) for j in range(self.TN)]
        pairs.sort(key=lambda p: (max(p[0], p[1]), p[0] + p[1]))
        rd = list(nxt)
        per = max(1, -(-len(rd) // max(1, len(pairs) - 4)))
        for idx, (i, j) in enumerate(pairs):
            Q.need({('A', st, i), ('B', st, j)})
            a.e('v_mfma_f32_16x16x32_bf16 %s, %s, %s, %s' % (vr(self.acc[i][j], 4), vr(self.fB[st][j], 4), vr(self.fA[st][i], 4), vr(self.acc[i][j], 4)))
            if idx == 0 and after_first: after_first()
            k = 0
            while rd and k < per:
                ins, tag = rd.pop(0)
                a.e(ins); Q.issue(tag); k += 1
        while rd:
            ins, tag = rd.pop(0)
            a.e(ins); Q.issue(tag)

    def mainloop(self):
        a, name, S, NK = self.a, self.name, self.S, self.NK
        self.Q = Q = LgkmQueue(a)
        a.e('s_barrier')
        for ins, tag in self._reads(0, 0, 0):
            a.e(ins); Q.issue(tag)
        saved = list(Q.q)
        def stage(slot, last):
            self._substep(0, self._reads(slot, 1, 1))
            if not last:
                def mid():
                    Q.drain()
                    a.e('s_barrier')
                self._substep(1, self._reads((slot + 1) % S, 0, 0), after_first=mid)
            else:
                self._substep(1, [])
        nloop = (NK - 1) // S
        rem = (NK - 1) % S
        if nloop > 0:
            a.e('s_mov_b32 s%d, %d' % (S_CNT, nloop))
            a.label('%s_cloop' % name)
            for sl in range(S): stage(sl, False)
            a.e('s_sub_u32 s%d, s%d, 1' % (S_CNT, S_CNT))
            a.e('s_cmp_lg_u32 s%d, 0' % S_CNT)
            a.e('s_cbranch_scc1 %s_cloop' % name)
            Q.q = list(saved)
        for sl in range(rem): stage(sl, False)
        stage(rem, True)
        self.last_slot = rem

    def ntile_col(self, j):
        gi, par, sub = self.nt[j]
        base = 0
        for g2 in range(gi): base += 64 if self.groups[g2][0] == 'pair' else 32
        return base + par * 32 + (0 if sub is None else sub * 16), sub is None
```

```python
import sys
from asmlib import *
from core import *

M, D, H, DFF = 2048, 1024, 32, 3584
WS_XN, WS_O, WS_H, WS_H1 = 0, 4 << 20, 8 << 20, 12 << 20
WS_KVP = 28 << 20
KVP_STRIDE = 2112 * 4
WS_FLAG = 31 << 20
WS_STAT = 32 << 20
WS_CS1 = 33 << 20
WS_STAMP = 40 << 20
OOB = 0x80000000
LOG2E = 0x3fb8aa3b

def allreduce16_add(a, t):
    a.e('v_add_f32_dpp v%d, v%d, v%d quad_perm:[1,0,3,2] row_mask:0xf bank_mask:0xf' % (t, t, t))
    a.e('v_add_f32_dpp v%d, v%d, v%d quad_perm:[2,3,0,1] row_mask:0xf bank_mask:0xf' % (t, t, t))
    a.e('v_add_f32_dpp v%d, v%d, v%d row_half_mirror row_mask:0xf bank_mask:0xf' % (t, t, t))
    a.e('v_add_f32_dpp v%d, v%d, v%d row_mirror row_mask:0xf bank_mask:0xf' % (t, t, t))

def allreduce8_add(a, t):
    a.e('v_add_f32_dpp v%d, v%d, v%d quad_perm:[1,0,3,2] row_mask:0xf bank_mask:0xf' % (t, t, t))
    a.e('v_add_f32_dpp v%d, v%d, v%d quad_perm:[2,3,0,1] row_mask:0xf bank_mask:0xf' % (t, t, t))
    a.e('v_add_f32_dpp v%d, v%d, v%d row_half_mirror row_mask:0xf bank_mask:0xf' % (t, t, t))

def xrow_reduce(a, op, items):
    for sw in ('v_permlane16_swap_b32', 'v_permlane32_swap_b32'):
        for (t, u), o in zip(items, op): a.e('v_mov_b32 v%d, v%d' % (u, t))
        for (t, u), o in zip(items, op): a.e('%s v%d, v%d' % (sw, t, u))
        for (t, u), o in zip(items, op): a.e('%s v%d, v%d, v%d' % (o, t, t, u))

def round_bf16(a, t):
    a.e('v_cvt_pk_bf16_f32 v%d, v%d, v%d' % (t, t, t))
    a.e('v_lshlrev_b32 v%d, 16, v%d' % (t, t))

def stamp(a, idx, on):
    if on: a.e('s_memrealtime s[%d:%d]' % (80 + 2 * idx, 81 + 2 * idx))

def stamp_store(a, kidx, on, nst, vtmp):
    if not on: return
    lab = a.newlabel('nost')
    a.e('s_waitcnt vmcnt(0) lgkmcnt(0)')
    a.e('s_cmp_lg_u32 s%d, 0' % S_WAVE)
    a.e('s_cbranch_scc1 %s' % lab)
    a.e('s_lshl_b32 s%d, s2, 6' % T0)
    a.e('s_add_u32 s%d, s%d, %d' % (T0, T0, WS_STAMP + kidx * 65536))
    a.e('s_add_u32 s%d, s%d, s%d' % (T3, P_WS, T0))
    a.e('s_addc_u32 s%d, s%d, 0' % (T4, P_WS + 1))
    a.e('v_mov_b32 v%d, 0' % vtmp)
    a.e('s_mov_b64 exec, 1')
    for i in range(nst):
        a.e('v_mov_b32 v%d, s%d' % (vtmp + 2, 80 + 2 * i))
        a.e('v_mov_b32 v%d, s%d' % (vtmp + 3, 81 + 2 * i))
        a.e('global_store_dwordx2 v%d, v[%d:%d], s[%d:%d] offset:%d' % (vtmp, vtmp + 2, vtmp + 3, T3, T4, 8 * i))
        a.e('s_nop 1')
    a.label(lab)

def gen_k0(a, name, st):
    kernel_header(a, name)
    a.e('s_cmp_ge_u32 s2, 256')
    a.e('s_cbranch_scc1 %s_done' % name)
    stamp(a, 0, st)
    load_ptrs(a)
    a.e('v_mov_b32 v1, v0')
    a.e('v_lshrrev_b32 v2, 6, v0')
    a.e('v_and_b32 v0, 63, v0')
    a.e('v_readfirstlane_b32 s%d, v2' % S_WAVE)
    a.e('s_waitcnt lgkmcnt(0)')
    make_srd(a, S_A, P_X, 0, None, M * D * 2)
    make_srd(a, S_B, P_W1, 0, None, D * DFF * 2)
    make_srd(a, S_X0, P_WQKV, 0, None, D * 3 * D * 2)
    make_srd(a, S_X1, P_WS, 0, None, 64 << 20)
    a.e('s_lshl_b32 s%d, s2, 3' % T0)
    a.e('s_add_u32 s%d, s%d, s%d' % (T0, T0, S_WAVE))
    a.e('s_lshl_b32 s%d, s%d, 11' % (T0, T0))
    a.e('v_lshl_add_u32 v3, v0, 4, s%d' % T0)
    a.e('buffer_load_dwordx4 v[8:11], v3, s[%d:%d], 0 offen' % (S_A, S_A + 3))
    a.e('buffer_load_dwordx4 v[12:15], v3, s[%d:%d], 0 offen offset:1024' % (S_A, S_A + 3))
    a.e('v_mul_u32_u24 v4, %d, v1' % (65536 // 14 + 1))
    a.e('v_lshrrev_b32 v4, 16, v4')
    a.e('v_mul_u32_u24 v5, 14, v4')
    a.e('v_sub_u32 v5, v1, v5')
    a.e('s_lshr_b32 s%d, s2, 5' % T1)
    a.e('s_and_b32 s%d, s2, 31' % T2)
    a.e('s_mul_i32 s%d, s%d, %d' % (T3, T1, 128 * DFF * 2))
    a.e('s_mul_i32 s%d, s%d, 224' % (T4, T2))
    a.e('s_add_u32 s%d, s%d, s%d' % (T3, T3, T4))
    a.e('v_mul_u32_u24 v6, %d, v4' % (4 * DFF * 2))
    a.e('v_lshl_add_u32 v6, v5, 4, v6')
    a.e('v_add_u32 v6, s%d, v6' % T3)
    a.e('v_mov_b32 v7, 0x%x' % OOB)
    a.e('v_cmp_gt_u32 vcc, 448, v1')
    a.e('v_cndmask_b32 v6, v7, v6, vcc')
    for r in range(4):
        a.e('s_mov_b32 s%d, %d' % (T4, r * DFF * 2))
        a.e('buffer_load_dwordx4 v[%d:%d], v6, s[%d:%d], s%d offen' % (16 + 4 * r, 19 + 4 * r, S_B, S_B + 3, T4))
    a.e('s_mul_i32 s%d, s2, 24576' % T3)
    a.e('v_lshl_add_u32 v7, v1, 4, s%d' % T3)
    for r in range(3):
        a.e('s_mov_b32 s%d, %d' % (T4, r * 8192))
        a.e('buffer_load_dwordx4 v[%d:%d], v7, s[%d:%d], s%d offen' % (32 + 4 * r, 35 + 4 * r, S_X0, S_X0 + 3, T4))
    lab = a.newlabel('noflag')
    a.e('s_cmp_ge_u32 s2, 32')
    a.e('s_cbranch_scc1 %s' % lab)
    a.e('s_cmp_lg_u32 s%d, 0' % S_WAVE)
    a.e('s_cbranch_scc1 %s' % lab)
    a.e('s_lshl_b32 s%d, s2, 7' % T3)
    a.e('s_add_u32 s%d, s%d, %d' % (T3, T3, WS_FLAG))
    a.e('v_lshl_add_u32 v44, v0, 1, s%d' % T3)
    a.e('v_lshl_add_u32 v44, v0, 2, s%d' % T3)
    a.e('v_mov_b32 v45, 0x%x' % OOB)
    a.e('v_cmp_gt_u32 vcc, 32, v0')
    a.e('v_cndmask_b32 v44, v45, v44, vcc')
    a.e('v_mov_b32 v45, 0')
    a.e('buffer_store_dword v45, v44, s[%d:%d], 0 offen' % (S_X1, S_X1 + 3))
    a.e('s_waitcnt vmcnt(8)')
    a.e('s_branch %s_x' % lab)
    a.label(lab)
    a.e('s_waitcnt vmcnt(7)')
    a.label(lab + '_x')
    X = 48
    for q in range(8):
        a.e('v_lshlrev_b32 v%d, 16, v%d' % (X + 2 * q, 8 + q))
        a.e('v_and_b32 v%d, 0xffff0000, v%d' % (X + 2 * q + 1, 8 + q))
    Sm = 64
    a.e('v_add_f32 v%d, v%d, v%d' % (Sm, X, X + 1))
    for q in range(2, 16): a.e('v_add_f32 v%d, v%d, v%d' % (Sm, Sm, X + q))
    allreduce16_add(a, Sm)
    xrow_reduce(a, ['v_add_f32'], [(Sm, Sm + 1)])
    a.e('v_mul_f32 v%d, 0x3a800000, v%d' % (Sm, Sm))
    V = 66
    a.e('v_sub_f32 v%d, v%d, v%d' % (V + 1, X, Sm))
    a.e('v_mul_f32 v%d, v%d, v%d' % (V, V + 1, V + 1))
    for q in range(1, 16):
        a.e('v_sub_f32 v%d, v%d, v%d' % (V + 1, X + q, Sm))
        a.e('v_fmac_f32 v%d, v%d, v%d' % (V, V + 1, V + 1))
    allreduce16_add(a, V)
    xrow_reduce(a, ['v_add_f32'], [(V, V + 1)])
    a.e('v_mul_f32 v%d, 0x3a800000, v%d' % (V, V))
    round_bf16(a, Sm)
    round_bf16(a, V)
    a.e('v_add_f32 v%d, 0x3727c5ac, v%d' % (V, V))
    round_bf16(a, V)
    a.e('v_sqrt_f32 v%d, v%d' % (V, V))
    round_bf16(a, V)
    a.e('v_rcp_f32 v%d, v%d' % (V, V))
    for q in range(8):
        a.e('v_sub_f32 v%d, v%d, v%d' % (X + 2 * q, X + 2 * q, Sm))
        a.e('v_sub_f32 v%d, v%d, v%d' % (X + 2 * q + 1, X + 2 * q + 1, Sm))
        a.e('v_cvt_pk_bf16_f32 v%d, v%d, v%d' % (8 + q, X + 2 * q, X + 2 * q + 1))
        a.e('v_lshlrev_b32 v%d, 16, v%d' % (X + 2 * q, 8 + q))
        a.e('v_and_b32 v%d, 0xffff0000, v%d' % (X + 2 * q + 1, 8 + q))
        a.e('v_mul_f32 v%d, v%d, v%d' % (X + 2 * q, X + 2 * q, V))
        a.e('v_mul_f32 v%d, v%d, v%d' % (X + 2 * q + 1, X + 2 * q + 1, V))
        a.e('v_cvt_pk_bf16_f32 v%d, v%d, v%d' % (8 + q, X + 2 * q, X + 2 * q + 1))
    a.e('buffer_store_dwordx4 v[8:11], v3, s[%d:%d], 0 offen' % (S_X1, S_X1 + 3))
    a.e('buffer_store_dwordx4 v[12:15], v3, s[%d:%d], 0 offen offset:1024' % (S_X1, S_X1 + 3))
    a.e('s_waitcnt vmcnt(5)')
    C = 48
    for q in range(8): a.e('v_mov_b32 v%d, 0' % (C + q))
    for r in range(4):
        for q in range(4):
            a.e('v_lshlrev_b32 v64, 16, v%d' % (16 + 4 * r + q))
            a.e('v_and_b32 v65, 0xffff0000, v%d' % (16 + 4 * r + q))
            a.e('v_add_f32 v%d, v%d, v64' % (C + 2 * q, C + 2 * q))
            a.e('v_add_f32 v%d, v%d, v65' % (C + 2 * q + 1, C + 2 * q + 1))
    a.e('v_mul_u32_u24 v66, 448, v4')
    a.e('v_lshl_add_u32 v66, v5, 5, v66')
    a.e('ds_write_b128 v66, v[%d:%d]' % (C, C + 3))
    a.e('ds_write_b128 v66, v[%d:%d] offset:16' % (C + 4, C + 7))
    a.e('s_waitcnt lgkmcnt(0)')
    a.e('s_barrier')
    lab2 = a.newlabel('nocs')
    a.e('s_cmp_ge_u32 s%d, 2' % S_WAVE)
    a.e('s_cbranch_scc1 %s' % lab2)
    a.e('v_lshlrev_b32 v66, 2, v1')
    for rg in range(32):
        a.e('ds_read_b32 v%d, v66 offset:%d' % (68 + rg, rg * 448))
    a.e('s_waitcnt lgkmcnt(0)')
    for rg in range(1, 32):
        a.e('v_add_f32 v68, v68, v%d' % (68 + rg))
    a.e('s_mul_i32 s%d, s%d, %d' % (T3, T1, DFF * 4))
    a.e('s_mul_i32 s%d, s%d, 448' % (T4, T2))
    a.e('s_add_u32 s%d, s%d, s%d' % (T3, T3, T4))
    a.e('s_add_u32 s%d, s%d, %d' % (T3, T3, WS_CS1))
    a.e('v_add_u32 v66, s%d, v66' % T3)
    a.e('v_mov_b32 v67, 0x%x' % OOB)
    a.e('v_cmp_gt_u32 vcc, 112, v1')
    a.e('v_cndmask_b32 v66, v67, v66, vcc')
    a.e('buffer_store_dword v68, v66, s[%d:%d], 0 offen' % (S_X1, S_X1 + 3))
    a.label(lab2)
    stamp(a, 1, st)
    stamp_store(a, 0, st, 2, 104)
    a.label('%s_done' % name)
    a.e('s_endpgm')
    return dict(lds=37 * 448, vgpr=112, grid=256, block=512)

def gemm_prologue(a, name, nwg, XM, XN, RM, RN, st):
    kernel_header(a, name)
    a.e('s_cmp_ge_u32 s2, %d' % nwg)
    a.e('s_cbranch_scc1 %s_done' % name)
    stamp(a, 0, st)
    load_ptrs(a)
    tile_map(a, XM, XN, RM, RN)
    wave_id(a)
    a.e('s_waitcnt lgkmcnt(0)')

def split_roles(a, name):
    a.e('s_cmp_ge_u32 s%d, 4' % S_WAVE)
    a.e('s_cbranch_scc1 %s_loader' % name)

def softmax_pair(a, p, T, outp, outn):
    for q in range(4):
        a.e('v_cvt_pk_bf16_f32 v%d, v%d, v%d' % (T + q, p + 2 * q, p + 2 * q + 1))
    for q in range(4):
        a.e('v_lshlrev_b32 v%d, 16, v%d' % (p + 2 * q, T + q))
        a.e('v_and_b32 v%d, 0xffff0000, v%d' % (p + 2 * q + 1, T + q))
    mx, mn, u0, u1 = T, T + 1, T + 2, T + 3
    a.e('v_max3_f32 v%d, v%d, v%d, v%d' % (mx, p, p + 1, p + 2))
    a.e('v_min3_f32 v%d, v%d, v%d, v%d' % (mn, p, p + 1, p + 2))
    a.e('v_max3_f32 v%d, v%d, v%d, v%d' % (mx, mx, p + 3, p + 4))
    a.e('v_min3_f32 v%d, v%d, v%d, v%d' % (mn, mn, p + 3, p + 4))
    a.e('v_max3_f32 v%d, v%d, v%d, v%d' % (mx, mx, p + 5, p + 6))
    a.e('v_min3_f32 v%d, v%d, v%d, v%d' % (mn, mn, p + 5, p + 6))
    a.e('v_max_f32 v%d, v%d, v%d' % (mx, mx, p + 7))
    a.e('v_min_f32 v%d, v%d, v%d' % (mn, mn, p + 7))
    xrow_reduce(a, ['v_max_f32', 'v_min_f32'], [(mx, u0), (mn, u1)])
    a.e('v_mul_f32 v%d, s%d, v%d' % (mx, 64, mx))
    a.e('v_mul_f32 v%d, s%d, v%d' % (mn, 64, mn))
    E1, E2 = T + 4, T + 12
    for q in range(8):
        a.e('v_fma_f32 v%d, v%d, s64, -v%d' % (E1 + q, p + q, mx))
        a.e('v_fma_f32 v%d, -v%d, s64, v%d' % (E2 + q, p + q, mn))
    for q in range(8):
        a.e('v_exp_f32 v%d, v%d' % (E1 + q, E1 + q))
        a.e('v_exp_f32 v%d, v%d' % (E2 + q, E2 + q))
    s1, s2 = T, T + 1
    a.e('v_add_f32 v%d, v%d, v%d' % (s1, E1, E1 + 1))
    a.e('v_add_f32 v%d, v%d, v%d' % (s2, E2, E2 + 1))
    for q in range(2, 8):
        a.e('v_add_f32 v%d, v%d, v%d' % (s1, s1, E1 + q))
        a.e('v_add_f32 v%d, v%d, v%d' % (s2, s2, E2 + q))
    xrow_reduce(a, ['v_add_f32', 'v_add_f32'], [(s1, u0), (s2, u1)])
    a.e('v_rcp_f32 v%d, v%d' % (s1, s1))
    a.e('v_rcp_f32 v%d, v%d' % (s2, s2))
    for q in range(8):
        a.e('v_mul_f32 v%d, v%d, v%d' % (E1 + q, E1 + q, s1))
        a.e('v_mul_f32 v%d, v%d, v%d' % (E2 + q, E2 + q, s2))
    for q in range(4):
        a.e('v_cvt_pk_bf16_f32 v%d, v%d, v%d' % (outp + q, E1 + 2 * q, E1 + 2 * q + 1))
        a.e('v_cvt_pk_bf16_f32 v%d, v%d, v%d' % (outn + q, E2 + 2 * q, E2 + 2 * q + 1))

def gen_k1(a, name, st):
    S, NK = 3, 16
    gemm_prologue(a, name, 256, 2, 4, 4, 8, st)
    C = Core(a, name, 256, [('single', 0), ('single', 2048), ('single', 4096)], NK, S, 4, 1, D * 2, 3 * D * 2)
    a.e('s_mul_i32 s%d, s%d, %d' % (T4, S_TM, 256 * D * 2))
    make_srd(a, S_A, P_WS, WS_XN, T4, M * D * 2)
    a.e('s_lshl_b32 s%d, s%d, 6' % (T4, S_TN))
    make_srd(a, S_B, P_WQKV, 0, T4, D * 3 * D * 2)
    make_srd(a, S_X0, P_WS, 0, None, 64 << 20)
    split_roles(a, name)
    R = RegAlloc(2, 256)
    C.compute_setup(R)
    LDS_WPHI = S * C.STAGE
    LDS_KVI = LDS_WPHI + 2048
    LDS_ZI = LDS_KVI + 4096
    LDS_TOTAL = LDS_ZI + 128
    vg, vm, vr_, vc = R.alloc(), R.alloc(), R.alloc(), R.alloc()
    a.e('v_lshrrev_b32 v%d, 4, v0' % vg)
    a.e('v_and_b32 v%d, 15, v0' % vm)
    a.e('v_bfe_u32 v%d, v0, 2, 2' % vr_)
    a.e('v_and_b32 v%d, 3, v0' % vc)
    wt = R.alloc(4, 4); wa = R.alloc(); wb = R.alloc()
    make_srd(a, S_X1, P_WPHI, 0, None, 32 * 32 * 32 * 2)
    a.e('s_lshl_b32 s%d, s%d, 11' % (T0, S_TN))
    a.e('s_lshl_b32 s%d, s%d, 9' % (T1, S_WAVE))
    a.e('s_add_u32 s%d, s%d, s%d' % (T0, T0, T1))
    a.e('v_lshl_add_u32 v%d, v0, 4, s%d' % (wa, T0))
    a.e('v_mov_b32 v%d, 0x%x' % (wb, OOB))
    a.e('v_cmp_gt_u32 vcc, 32, v0')
    a.e('v_cndmask_b32 v%d, v%d, v%d, vcc' % (wa, wb, wa))
    a.e('buffer_load_dwordx4 v[%d:%d], v%d, s[%d:%d], 0 offen' % (wt, wt + 3, wa, S_X1, S_X1 + 3))
    a.e('s_add_u32 s%d, s%d, %d' % (T1, T1, LDS_WPHI))
    a.e('v_lshl_add_u32 v%d, v0, 4, s%d' % (wb, T1))
    a.e('s_waitcnt vmcnt(0)')
    a.e('s_mov_b64 s[66:67], exec')
    a.e('s_mov_b64 exec, 0xffffffff')
    a.e('ds_write_b128 v%d, v[%d:%d]' % (wb, wt, wt + 3))
    a.e('s_mov_b64 exec, s[66:67]')
    a.e('s_waitcnt lgkmcnt(0)')
    a.e('s_mov_b32 s64, 0x%x' % LOG2E)
    C.mainloop()
    stamp(a, 1, st)
    acc = C.acc
    F = RegAlloc(C.frag0, C.frag_end)
    Wf = [F.alloc(4, 4), F.alloc(4, 4)]
    va = F.alloc()
    a.e('v_lshl_add_u32 v%d, v%d, 2, v%d' % (va, vg, vr_))
    a.e('v_lshlrev_b32 v%d, 6, v%d' % (va, va))
    a.e('v_lshl_add_u32 v%d, v%d, 3, v%d' % (va, vc, va))
    a.e('v_add_u32 v%d, %d, v%d' % (va, LDS_WPHI, va))
    for ft in range(2):
        for hh in range(2):
            a.e('ds_read_b64_tr_b16 %s, v%d offset:%d' % (vr(Wf[ft] + 2 * hh, 2), va, hh * 16 * 64 + ft * 32))
    PHK, RSK = 1 * C.STAGE, 144
    VV, RSV = PHK + 256 * RSK, 80
    assert VV + 256 * RSV <= 3 * C.STAGE and C.last_slot == 0
    wk, wv = F.alloc(), F.alloc()
    a.e('s_lshl_b32 s%d, s%d, 6' % (T0, S_WAVE))
    a.e('v_add_u32 v%d, s%d, v%d' % (wk, T0, vm))
    a.e('v_mul_u32_u24 v%d, %d, v%d' % (wv, RSV, wk))
    a.e('v_mul_u32_u24 v%d, %d, v%d' % (wk, RSK, wk))
    a.e('v_lshl_add_u32 v%d, v%d, 3, v%d' % (wk, vg, wk))
    a.e('v_lshl_add_u32 v%d, v%d, 3, v%d' % (wv, vg, wv))
    a.e('v_add_u32 v%d, %d, v%d' % (wk, PHK, wk))
    a.e('v_add_u32 v%d, %d, v%d' % (wv, VV, wv))
    xb = F.alloc(4, 4); p = F.alloc(8, 4); T = F.alloc(24, 4); o1 = F.alloc(4, 4); o2 = F.alloc(4, 4)
    a.e('s_waitcnt lgkmcnt(0)')
    def feat(i, j0, outp, outn):
        a.e('v_cvt_pk_bf16_f32 v%d, v%d, v%d' % (xb, acc[i][j0], acc[i][j0] + 1))
        a.e('v_cvt_pk_bf16_f32 v%d, v%d, v%d' % (xb + 1, acc[i][j0] + 2, acc[i][j0] + 3))
        a.e('v_cvt_pk_bf16_f32 v%d, v%d, v%d' % (xb + 2, acc[i][j0 + 1], acc[i][j0 + 1] + 1))
        a.e('v_cvt_pk_bf16_f32 v%d, v%d, v%d' % (xb + 3, acc[i][j0 + 1] + 2, acc[i][j0 + 1] + 3))
        a.e('v_mfma_f32_16x16x32_bf16 %s, %s, %s, 0' % (vr(p, 4), vr(Wf[0], 4), vr(xb, 4)))
        a.e('v_mfma_f32_16x16x32_bf16 %s, %s, %s, 0' % (vr(p + 4, 4), vr(Wf[1], 4), vr(xb, 4)))
        softmax_pair(a, p, T, outp, outn)
    for i in range(4):
        feat(i, 2, o1, o2)
        for ft in range(2):
            a.e('ds_write_b64 v%d, %s offset:%d' % (wk, vr(o1 + 2 * ft, 2), i * 16 * RSK + ft * 32))
            a.e('ds_write_b64 v%d, %s offset:%d' % (wk, vr(o2 + 2 * ft, 2), i * 16 * RSK + 64 + ft * 32))
        for dt in range(2):
            b = acc[i][4 + dt]
            a.e('v_cvt_pk_bf16_f32 v%d, v%d, v%d' % (b, b, b + 1))
            a.e('v_cvt_pk_bf16_f32 v%d, v%d, v%d' % (b + 1, b + 2, b + 3))
            a.e('ds_write_b64 v%d, %s offset:%d' % (wv, vr(b, 2), i * 16 * RSV + dt * 32))
    a.e('s_waitcnt lgkmcnt(0)')
    a.e('s_barrier')
    ra, rb_ = F.alloc(), F.alloc()
    a.e('v_lshl_add_u32 v%d, v%d, 3, v%d' % (ra, vg, vr_))
    a.e('v_mul_u32_u24 v%d, %d, v%d' % (rb_, RSV, ra))
    a.e('v_mul_u32_u24 v%d, %d, v%d' % (ra, RSK, ra))
    a.e('v_lshl_add_u32 v%d, v%d, 3, v%d' % (ra, vc, ra))
    a.e('v_lshl_add_u32 v%d, v%d, 3, v%d' % (rb_, vc, rb_))
    a.e('s_lshl_b32 s%d, s%d, 5' % (T0, S_WAVE))
    a.e('s_add_u32 s%d, s%d, %d' % (T0, T0, PHK))
    a.e('v_add_u32 v%d, s%d, v%d' % (ra, T0, ra))
    a.e('v_add_u32 v%d, %d, v%d' % (rb_, VV, rb_))
    kvacc = [acc[0][2], acc[0][3]]; zacc = acc[0][4]; ones = acc[0][5]
    for r in range(4):
        a.e('v_mov_b32 v%d, 0' % (kvacc[0] + r)); a.e('v_mov_b32 v%d, 0' % (kvacc[1] + r)); a.e('v_mov_b32 v%d, 0' % (zacc + r))
        a.e('v_mov_b32 v%d, 0x3f803f80' % (ones + r))
    bufs = [(acc[1][2], acc[1][3], acc[1][4]), (acc[2][2], acc[2][3], acc[2][4])]
    Q = LgkmQueue(a)
    def kv_reads(ks):
        pf, v0_, v1_ = bufs[ks % 2]
        for hh in range(2):
            a.e('ds_read_b64_tr_b16 %s, v%d offset:%d' % (vr(pf + 2 * hh, 2), ra, (32 * ks + 4 * hh) * RSK)); Q.issue(('p', ks))
        for dt, vb in enumerate((v0_, v1_)):
            for hh in range(2):
                a.e('ds_read_b64_tr_b16 %s, v%d offset:%d' % (vr(vb + 2 * hh, 2), rb_, (32 * ks + 4 * hh) * RSV + dt * 32)); Q.issue(('v', ks, dt))
    kv_reads(0)
    for ks in range(8):
        if ks + 1 < 8: kv_reads(ks + 1)
        pf, v0_, v1_ = bufs[ks % 2]
        Q.need({('p', ks), ('v', ks, 0)})
        a.e('v_mfma_f32_16x16x32_bf16 %s, %s, %s, %s' % (vr(kvacc[0], 4), vr(v0_, 4), vr(pf, 4), vr(kvacc[0], 4)))
        a.e('v_mfma_f32_16x16x32_bf16 %s, %s, %s, %s' % (vr(zacc, 4), vr(ones, 4), vr(pf, 4), vr(zacc, 4)))
        Q.need({('v', ks, 1)})
        a.e('v_mfma_f32_16x16x32_bf16 %s, %s, %s, %s' % (vr(kvacc[1], 4), vr(v1_, 4), vr(pf, 4), vr(kvacc[1], 4)))
    so = F.alloc(); sz = F.alloc()
    a.e('s_lshl_b32 s%d, s%d, 3' % (T0, S_TN))
    a.e('s_add_u32 s%d, s%d, s%d' % (T0, T0, S_TM))
    a.e('s_mul_i32 s%d, s%d, %d' % (T0, T0, KVP_STRIDE))
    a.e('s_add_u32 s%d, s%d, %d' % (T0, T0, WS_KVP))
    a.e('s_lshl_b32 s%d, s%d, 11' % (T1, S_WAVE))
    a.e('s_add_u32 s%d, s%d, s%d' % (T1, T1, T0))
    a.e('v_lshlrev_b32 v%d, 7, v%d' % (so, vm))
    a.e('v_lshl_add_u32 v%d, v%d, 4, v%d' % (so, vg, so))
    a.e('v_add_u32 v%d, s%d, v%d' % (so, T1, so))
    a.e('buffer_store_dwordx4 %s, v%d, s[%d:%d], 0 offen sc0 sc1' % (vr(kvacc[0], 4), so, S_X0, S_X0 + 3))
    a.e('buffer_store_dwordx4 %s, v%d, s[%d:%d], 0 offen offset:64 sc0 sc1' % (vr(kvacc[1], 4), so, S_X0, S_X0 + 3))
    a.e('s_lshl_b32 s%d, s%d, 6' % (T1, S_WAVE))
    a.e('s_add_u32 s%d, s%d, s%d' % (T1, T1, T0))
    a.e('s_add_u32 s%d, s%d, 8192' % (T1, T1))
    a.e('v_lshl_add_u32 v%d, v0, 2, s%d' % (sz, T1))
    a.e('v_mov_b32 v%d, 0x%x' % (so, OOB)) if False else None
    zt = F.alloc()
    a.e('v_mov_b32 v%d, 0x%x' % (zt, OOB))
    a.e('v_cmp_gt_u32 vcc, 16, v0')
    a.e('v_cndmask_b32 v%d, v%d, v%d, vcc' % (sz, zt, sz))
    a.e('buffer_store_dword v%d, v%d, s[%d:%d], 0 offen sc0 sc1' % (zacc, sz, S_X0, S_X0 + 3))
    a.e('s_waitcnt vmcnt(0)')
    a.e('s_barrier')
    lab = a.newlabel('noflag')
    a.e('s_cmp_lg_u32 s%d, 0' % S_WAVE)
    a.e('s_cbranch_scc1 %s' % lab)
    a.e('s_lshl_b32 s%d, s%d, 7' % (T1, S_TN))
    a.e('s_lshl_b32 s%d, s%d, 2' % (T2, S_TM))
    a.e('s_add_u32 s%d, s%d, s%d' % (T1, T1, T2))
    a.e('s_add_u32 s%d, s%d, %d' % (T1, T1, WS_FLAG))
    a.e('v_mov_b32 v%d, 0x%x' % (sz, OOB))
    a.e('v_mov_b32 v%d, s%d' % (zt, T1))
    a.e('v_cmp_eq_u32 vcc, 0, v0')
    a.e('v_cndmask_b32 v%d, v%d, v%d, vcc' % (sz, sz, zt))
    a.e('v_mov_b32 v%d, 1' % zt)
    a.e('buffer_store_dword v%d, v%d, s[%d:%d], 0 offen sc0 sc1' % (zt, sz, S_X0, S_X0 + 3))
    a.label(lab)
    stamp(a, 2, st)
    phq = []
    pool = [acc[1][2], acc[1][3], acc[1][4], acc[1][5], acc[2][2], acc[2][3], acc[2][4], acc[2][5]]
    for i in range(4):
        phq.append((pool[2 * i], pool[2 * i + 1]))
        feat(i, 0, pool[2 * i], pool[2 * i + 1])
    stamp(a, 3, st)
    lab = a.newlabel('nopoll')
    a.e('s_cmp_lg_u32 s%d, 0' % S_WAVE)
    a.e('s_cbranch_scc1 %s' % lab)
    a.e('s_lshl_b32 s%d, s%d, 7' % (T1, S_TN))
    a.e('s_add_u32 s%d, s%d, %d' % (T1, T1, WS_FLAG))
    a.e('v_and_b32 v%d, 7, v0' % sz)
    a.e('v_lshl_add_u32 v%d, v%d, 2, s%d' % (sz, sz, T1))
    a.label(lab + '_loop')
    a.e('buffer_load_dword v%d, v%d, s[%d:%d], 0 offen sc0 sc1' % (zt, sz, S_X0, S_X0 + 3))
    a.e('s_waitcnt vmcnt(0)')
    a.e('v_cmp_ne_u32 vcc, 1, v%d' % zt)
    a.e('s_cmp_eq_u64 vcc, 0')
    a.e('s_cbranch_scc1 %s' % lab)
    a.e('s_sleep 2')
    a.e('s_branch %s_loop' % lab)
    a.label(lab)
    a.e('s_barrier')
    stamp(a, 4, st)
    tid = so
    a.e('s_lshl_b32 s%d, s%d, 6' % (T1, S_WAVE))
    a.e('v_add_u32 v%d, s%d, v0' % (tid, T1))
    a.e('s_mul_i32 s%d, s%d, %d' % (T0, S_TN, 8 * KVP_STRIDE))
    a.e('s_add_u32 s%d, s%d, %d' % (T0, T0, WS_KVP))
    a.e('v_lshl_add_u32 v%d, v%d, 4, s%d' % (sz, tid, T0))
    bufA = [acc[3][2], acc[3][3], acc[3][4], acc[3][5], acc[0][2], acc[0][3], acc[0][4], acc[0][5]]
    bufB = [T + 4 * q for q in range(6)] + [p, p + 4]
    zoff = zt
    a.e('v_add_u32 v%d, 8192, v%d' % (zoff, sz))
    a.e('v_mov_b32 v%d, 0x%x' % (xb, OOB))
    a.e('v_cmp_gt_u32 vcc, 16, v%d' % tid)
    a.e('v_cndmask_b32 v%d, v%d, v%d, vcc' % (zoff, xb, zoff))
    for rb in range(8):
        a.e('s_mov_b32 s%d, %d' % (T1, rb * KVP_STRIDE))
        a.e('buffer_load_dwordx4 %s, v%d, s[%d:%d], s%d offen sc0 sc1' % (vr(bufA[rb], 4), sz, S_X0, S_X0 + 3, T1))
        a.e('buffer_load_dwordx4 %s, v%d, s[%d:%d], s%d offen offset:4080 sc0 sc1' % (vr(bufB[rb], 4), sz, S_X0, S_X0 + 3, T1)) if False else None
    sz2 = o1
    a.e('v_add_u32 v%d, 4096, v%d' % (sz2, sz))
    for rb in range(8):
        a.e('s_mov_b32 s%d, %d' % (T1, rb * KVP_STRIDE))
        a.e('buffer_load_dwordx4 %s, v%d, s[%d:%d], s%d offen sc0 sc1' % (vr(bufB[rb], 4), sz2, S_X0, S_X0 + 3, T1))
    a.e('s_waitcnt vmcnt(8)')
    for rb in range(1, 8):
        for r in range(4): a.e('v_add_f32 v%d, v%d, v%d' % (bufA[0] + r, bufA[0] + r, bufA[rb] + r))
    for rb in range(8):
        a.e('s_mov_b32 s%d, %d' % (T1, rb * KVP_STRIDE))
        dst = bufA[rb] if rb else o2
        a.e('buffer_load_dwordx4 %s, v%d, s[%d:%d], s%d offen sc0 sc1' % (vr(dst, 4), zoff, S_X0, S_X0 + 3, T1))
    a.e('v_cvt_pk_bf16_f32 v%d, v%d, v%d' % (bufA[0], bufA[0], bufA[0] + 1))
    a.e('v_cvt_pk_bf16_f32 v%d, v%d, v%d' % (bufA[0] + 1, bufA[0] + 2, bufA[0] + 3))
    la = xb + 1
    a.e('v_lshlrev_b32 v%d, 3, v%d' % (la, tid))
    a.e('v_add_u32 v%d, %d, v%d' % (la, LDS_KVI, la))
    a.e('ds_write_b64 v%d, %s' % (la, vr(bufA[0], 2)))
    a.e('s_waitcnt vmcnt(8)')
    for rb in range(1, 8):
        for r in range(4): a.e('v_add_f32 v%d, v%d, v%d' % (bufB[0] + r, bufB[0] + r, bufB[rb] + r))
    a.e('v_cvt_pk_bf16_f32 v%d, v%d, v%d' % (bufB[0], bufB[0], bufB[0] + 1))
    a.e('v_cvt_pk_bf16_f32 v%d, v%d, v%d' % (bufB[0] + 1, bufB[0] + 2, bufB[0] + 3))
    a.e('ds_write_b64 v%d, %s offset:%d' % (la, vr(bufB[0], 2), 2048))
    a.e('s_waitcnt vmcnt(0)')
    for rb in range(1, 8):
        for r in range(4): a.e('v_add_f32 v%d, v%d, v%d' % (o2 + r, o2 + r, bufA[rb] + r))
    a.e('v_cvt_pk_bf16_f32 v%d, v%d, v%d' % (o2, o2, o2 + 1))
    a.e('v_cvt_pk_bf16_f32 v%d, v%d, v%d' % (o2 + 1, o2 + 2, o2 + 3))
    a.e('v_cmp_gt_u32 vcc, 16, v%d' % tid)
    a.e('s_and_saveexec_b64 s[66:67], vcc')
    lab = a.newlabel('noz')
    a.e('s_cbranch_execz %s' % lab)
    a.e('ds_write_b64 v%d, %s offset:%d' % (la, vr(o2, 2), LDS_ZI - LDS_KVI))
    a.label(lab)
    a.e('s_mov_b64 exec, s[66:67]')
    a.e('s_waitcnt lgkmcnt(0)')
    a.e('s_barrier')
    kvT = [[acc[3][2], acc[3][3]], [acc[3][4], acc[3][5]]]
    zf = [acc[0][2], acc[0][3]]
    for dt in range(2):
        for half in range(2):
            for hh in range(2):
                a.e('ds_read_b64_tr_b16 %s, v%d offset:%d' % (vr(kvT[dt][half] + 2 * hh, 2), va, LDS_KVI - LDS_WPHI + (32 * half + 16 * hh) * 64 + dt * 32))
    zaddr = xb
    a.e('v_lshlrev_b32 v%d, 3, v%d' % (zaddr, vg))
    a.e('v_add_u32 v%d, %d, v%d' % (zaddr, LDS_ZI, zaddr))
    for half in range(2):
        for hh in range(2):
            a.e('ds_read_b64 %s, v%d offset:%d' % (vr(zf[half] + 2 * hh, 2), zaddr, (32 * half + 16 * hh) * 2))
    a.e('s_lshl_b32 s%d, s%d, 8' % (T0, S_TM))
    a.e('s_lshl_b32 s%d, s%d, 6' % (T1, S_WAVE))
    a.e('s_add_u32 s%d, s%d, s%d' % (T0, T0, T1))
    a.e('s_lshl_b32 s%d, s%d, 11' % (T0, T0))
    a.e('s_lshl_b32 s%d, s%d, 6' % (T1, S_TN))
    a.e('s_add_u32 s%d, s%d, s%d' % (T0, T0, T1))
    a.e('s_add_u32 s%d, s%d, %d' % (T0, T0, WS_O))
    a.e('v_lshlrev_b32 v%d, 11, v%d' % (so, vm))
    a.e('v_lshl_add_u32 v%d, v%d, 3, v%d' % (so, vg, so))
    a.e('v_add_u32 v%d, s%d, v%d' % (so, T0, so))
    a.e('s_waitcnt lgkmcnt(0)')
    n0, n1, dn = T, T + 4, T + 8
    for i in range(4):
        pp, nn = phq[i]
        a.e('v_mfma_f32_16x16x32_bf16 %s, %s, %s, 0' % (vr(n0, 4), vr(kvT[0][0], 4), vr(pp, 4)))
        a.e('v_mfma_f32_16x16x32_bf16 %s, %s, %s, 0' % (vr(n1, 4), vr(kvT[1][0], 4), vr(pp, 4)))
        a.e('v_mfma_f32_16x16x32_bf16 %s, %s, %s, 0' % (vr(dn, 4), vr(zf[0], 4), vr(pp, 4)))
        a.e('v_mfma_f32_16x16x32_bf16 %s, %s, %s, %s' % (vr(n0, 4), vr(kvT[0][1], 4), vr(nn, 4), vr(n0, 4)))
        a.e('v_mfma_f32_16x16x32_bf16 %s, %s, %s, %s' % (vr(n1, 4), vr(kvT[1][1], 4), vr(nn, 4), vr(n1, 4)))
        a.e('v_mfma_f32_16x16x32_bf16 %s, %s, %s, %s' % (vr(dn, 4), vr(zf[1], 4), vr(nn, 4), vr(dn, 4)))
        round_bf16(a, dn)
        a.e('v_add_f32 v%d, 0x358637bd, v%d' % (dn, dn))
        round_bf16(a, dn)
        a.e('v_rcp_f32 v%d, v%d' % (dn, dn))
        for nb in (n0, n1):
            a.e('v_cvt_pk_bf16_f32 v%d, v%d, v%d' % (T + 12, nb, nb + 1))
            a.e('v_cvt_pk_bf16_f32 v%d, v%d, v%d' % (T + 13, nb + 2, nb + 3))
            a.e('v_lshlrev_b32 v%d, 16, v%d' % (nb, T + 12))
            a.e('v_and_b32 v%d, 0xffff0000, v%d' % (nb + 1, T + 12))
            a.e('v_lshlrev_b32 v%d, 16, v%d' % (nb + 2, T + 13))
            a.e('v_and_b32 v%d, 0xffff0000, v%d' % (nb + 3, T + 13))
            for r in range(4): a.e('v_mul_f32 v%d, v%d, v%d' % (nb + r, nb + r, dn))
            a.e('v_cvt_pk_bf16_f32 v%d, v%d, v%d' % (nb, nb, nb + 1))
            a.e('v_cvt_pk_bf16_f32 v%d, v%d, v%d' % (nb + 1, nb + 2, nb + 3))
        a.e('s_mov_b32 s%d, %d' % (T1, i * 16 * 2048))
        a.e('buffer_store_dwordx2 %s, v%d, s[%d:%d], s%d offen' % (vr(n0, 2), so, S_X0, S_X0 + 3, T1))
        a.e('buffer_store_dwordx2 %s, v%d, s[%d:%d], s%d offen offset:32' % (vr(n1, 2), so, S_X0, S_X0 + 3, T1))
        a.e('s_waitcnt vmcnt(0)') if i < 3 else None
    stamp(a, 5, st)
    stamp_store(a, 1, st, 6, T)
    a.e('s_endpgm')
    a.label('%s_loader' % name)
    C.loader()
    a.label('%s_done' % name)
    a.e('s_endpgm')
    return dict(lds=LDS_TOTAL, vgpr=256, grid=256, block=512)

def gen_res_gemm(a, name, st, kidx, A_off, K, B_ptr, R_ptr, R_off, O_ptr, O_off, stats, S=4):
    NK = K // 64
    gemm_prologue(a, name, 256, 4, 2, 4, 8, st)
    C = Core(a, name, 128, [('pair', 0)], NK, S, 2, 2, K * 2, D * 2)
    a.e('s_mul_i32 s%d, s%d, %d' % (T4, S_TM, 128 * K * 2))
    make_srd(a, S_A, P_WS, A_off, T4, M * K * 2)
    a.e('s_lshl_b32 s%d, s%d, 7' % (T4, S_TN))
    make_srd(a, S_B, B_ptr, 0, T4, K * D * 2)
    a.e('s_lshl_b32 s%d, s%d, 18' % (T4, S_TM))
    a.e('s_lshl_b32 s%d, s%d, 7' % (T5, S_TN))
    a.e('s_add_u32 s%d, s%d, s%d' % (T4, T4, T5))
    make_srd(a, S_X0, R_ptr, R_off, T4, M * D * 2)
    make_srd(a, S_X1, O_ptr, O_off, T4, M * D * 2)
    make_srd(a, S_X2, P_WS, WS_STAT, None, 16 * M * 8)
    split_roles(a, name)
    R = RegAlloc(2, 256)
    C.compute_setup(R)
    tid = R.alloc(); go = R.alloc(); lo = R.alloc()
    xr = [R.alloc(4, 4) for _ in range(4)]
    a.e('s_lshl_b32 s%d, s%d, 6' % (T0, S_WAVE))
    a.e('v_add_u32 v%d, s%d, v0' % (tid, T0))
    a.e('v_lshrrev_b32 v%d, 3, v%d' % (go, tid))
    a.e('v_and_b32 v%d, 7, v%d' % (lo, tid))
    a.e('v_lshlrev_b32 v%d, 4, v%d' % (lo, lo))
    RS = 144
    tt = R.alloc()
    a.e('v_mul_u32_u24 v%d, %d, v%d' % (tt, RS, go))
    a.e('v_lshl_add_u32 v%d, v%d, 11, v%d' % (go, go, lo))
    a.e('v_add_u32 v%d, v%d, v%d' % (lo, lo, tt))
    for it in range(4):
        a.e('s_mov_b32 s%d, %d' % (T0, it * 32 * 2048))
        a.e('buffer_load_dwordx4 %s, v%d, s[%d:%d], s%d offen' % (vr(xr[it], 4), go, S_X0, S_X0 + 3, T0))
    C.mainloop()
    stamp(a, 1, st)
    acc = C.acc
    free = [s for s in range(S) if s != C.last_slot]
    EP = (C.last_slot + 1) % S * C.STAGE
    if EP + 128 * RS > S * C.STAGE: EP = 0
    assert not (EP < (C.last_slot + 1) * C.STAGE and EP + 128 * RS > C.last_slot * C.STAGE)
    F = RegAlloc(C.frag0, C.frag_end)
    wa = F.alloc(); t1 = F.alloc()
    a.e('v_and_b32 v%d, 15, v0' % wa)
    a.e('s_lshl_b32 s%d, s%d, 6' % (T0, S_WM))
    a.e('v_add_u32 v%d, s%d, v%d' % (wa, T0, wa))
    a.e('v_mul_u32_u24 v%d, %d, v%d' % (wa, RS, wa))
    a.e('v_lshrrev_b32 v%d, 4, v0' % t1)
    a.e('v_lshl_add_u32 v%d, v%d, 3, v%d' % (wa, t1, wa))
    a.e('s_lshl_b32 s%d, s%d, 5' % (T0, S_WN))
    a.e('s_add_u32 s%d, s%d, %d' % (T0, T0, EP))
    a.e('v_add_u32 v%d, s%d, v%d' % (wa, T0, wa))
    a.e('v_add_u32 v%d, %d, v%d' % (lo, EP, lo))
    for i in range(4):
        for j in range(2):
            b = acc[i][j]
            a.e('v_cvt_pk_bf16_f32 v%d, v%d, v%d' % (b, b, b + 1))
            a.e('v_cvt_pk_bf16_f32 v%d, v%d, v%d' % (b + 1, b + 2, b + 3))
            a.e('ds_write_b64 v%d, %s offset:%d' % (wa, vr(b, 2), i * 16 * RS + j * 64))
    a.e('s_waitcnt lgkmcnt(0)')
    a.e('s_barrier')
    ar = [F.alloc(4, 4) for _ in range(4)]
    for it in range(4):
        a.e('ds_read_b128 %s, v%d offset:%d' % (vr(ar[it], 4), lo, it * 32 * RS))
    hv = F.alloc(8, 4); t2 = F.alloc(); t3 = F.alloc(); sm = F.alloc(2, 2);
    so = F.alloc()
    if stats:
        a.e('s_lshl_b32 s%d, s%d, 11' % (T0, S_TN))
        a.e('s_lshl_b32 s%d, s%d, 7' % (T1, S_TM))
        a.e('s_add_u32 s%d, s%d, s%d' % (T0, T0, T1))
        a.e('v_lshrrev_b32 v%d, 3, v%d' % (so, tid))
        a.e('v_add_u32 v%d, s%d, v%d' % (so, T0, so))
        a.e('v_lshlrev_b32 v%d, 3, v%d' % (so, so))
        a.e('v_mov_b32 v%d, 0x%x' % (t2, OOB))
        a.e('v_and_b32 v%d, 7, v%d' % (t3, tid))
        a.e('v_cmp_eq_u32 vcc, 0, v%d' % t3)
        a.e('v_cndmask_b32 v%d, v%d, v%d, vcc' % (so, t2, so))
    a.e('s_waitcnt vmcnt(0)')
    for it in range(4):
        a.e('s_waitcnt lgkmcnt(%d)' % (3 - it))
        for q in range(4):
            a.e('v_lshlrev_b32 v%d, 16, v%d' % (hv + 2 * q, ar[it] + q))
            a.e('v_lshlrev_b32 v%d, 16, v%d' % (t2, xr[it] + q))
            a.e('v_add_f32 v%d, v%d, v%d' % (hv + 2 * q, hv + 2 * q, t2))
            a.e('v_and_b32 v%d, 0xffff0000, v%d' % (hv + 2 * q + 1, ar[it] + q))
            a.e('v_and_b32 v%d, 0xffff0000, v%d' % (t3, xr[it] + q))
            a.e('v_add_f32 v%d, v%d, v%d' % (hv + 2 * q + 1, hv + 2 * q + 1, t3))
            a.e('v_cvt_pk_bf16_f32 v%d, v%d, v%d' % (ar[it] + q, hv + 2 * q, hv + 2 * q + 1))
        a.e('s_mov_b32 s%d, %d' % (T0, it * 32 * 2048))
        a.e('buffer_store_dwordx4 %s, v%d, s[%d:%d], s%d offen' % (vr(ar[it], 4), go, S_X1, S_X1 + 3, T0))
        if stats:
            for q in range(4):
                a.e('v_lshlrev_b32 v%d, 16, v%d' % (hv + 2 * q, ar[it] + q))
                a.e('v_and_b32 v%d, 0xffff0000, v%d' % (hv + 2 * q + 1, ar[it] + q))
            a.e('v_add_f32 v%d, v%d, v%d' % (sm, hv, hv + 1))
            for q in range(2, 8): a.e('v_add_f32 v%d, v%d, v%d' % (sm, sm, hv + q))
            allreduce8_add(a, sm)
            a.e('v_mul_f32 v%d, 0x3c800000, v%d' % (t2, sm))
            a.e('v_sub_f32 v%d, v%d, v%d' % (t3, hv, t2))
            a.e('v_mul_f32 v%d, v%d, v%d' % (sm + 1, t3, t3))
            for q in range(1, 8):
                a.e('v_sub_f32 v%d, v%d, v%d' % (t3, hv + q, t2))
                a.e('v_fmac_f32 v%d, v%d, v%d' % (sm + 1, t3, t3))
            allreduce8_add(a, sm + 1)
            a.e('s_mov_b32 s%d, %d' % (T0, it * 32 * 8))
            a.e('buffer_store_dwordx2 %s, v%d, s[%d:%d], s%d offen' % (vr(sm, 2), so, S_X2, S_X2 + 3, T0))
            a.e('s_nop 1')
    stamp(a, 2, st)
    stamp_store(a, kidx, st, 3, hv)
    a.e('s_endpgm')
    a.label('%s_loader' % name)
    C.loader()
    a.label('%s_done' % name)
    a.e('s_endpgm')
    return dict(lds=S * C.STAGE, vgpr=256, grid=256, block=512)

def gen_k3(a, name, st):
    S, NK = 3, 16
    gemm_prologue(a, name, 256, 2, 4, 8, 4, st)
    groups = [('pair', 0), ('pair', 128), ('pair', 256), ('single', 384)]
    C = Core(a, name, 128, groups, NK, S, 2, 2, D * 2, DFF * 2)
    a.e('s_mul_i32 s%d, s%d, %d' % (T4, S_TM, 128 * D * 2))
    make_srd(a, S_A, P_WS, WS_H, T4, M * D * 2)
    a.e('s_mul_i32 s%d, s%d, 448' % (T4, S_TN))
    make_srd(a, S_B, P_W1, 0, T4, D * DFF * 2)
    a.e('s_mul_i32 s%d, s%d, %d' % (T5, S_TM, 128 * DFF * 2))
    a.e('s_add_u32 s%d, s%d, s%d' % (T4, T4, T5))
    make_srd(a, S_X1, P_WS, WS_H1, T4, M * DFF * 2)
    make_srd(a, S_X0, P_WS, 0, None, 64 << 20)
    split_roles(a, name)
    R = RegAlloc(2, 256)
    C.compute_setup(R)
    LDS_MR = S * C.STAGE
    LDS_CS = LDS_MR + 1024
    LDS_TOTAL = LDS_CS + 1024
    F = RegAlloc(C.frag0, C.frag_end)
    tid = F.alloc(); ad = F.alloc(); t2 = F.alloc(); t3 = F.alloc()
    sb = F.alloc(32, 4); cb = F.alloc(8, 4)
    a.e('s_lshl_b32 s%d, s%d, 6' % (T0, S_WAVE))
    a.e('v_add_u32 v%d, s%d, v0' % (tid, T0))
    a.e('s_lshl_b32 s%d, s%d, 7' % (T0, S_TM))
    a.e('v_add_u32 v%d, s%d, v%d' % (ad, T0, tid))
    a.e('v_lshlrev_b32 v%d, 3, v%d' % (ad, ad))
    a.e('v_add_u32 v%d, %d, v%d' % (ad, WS_STAT, ad))
    a.e('v_mov_b32 v%d, 0x%x' % (t2, OOB))
    a.e('v_cmp_gt_u32 vcc, 128, v%d' % tid)
    a.e('v_cndmask_b32 v%d, v%d, v%d, vcc' % (ad, t2, ad))
    for cbk in range(16):
        a.e('s_mov_b32 s%d, %d' % (T0, cbk * M * 8))
        a.e('buffer_load_dwordx2 %s, v%d, s[%d:%d], s%d offen' % (vr(sb + 2 * cbk, 2), ad, S_X0, S_X0 + 3, T0))
    a.e('s_mul_i32 s%d, s%d, 224' % (T0, S_TN))
    a.e('v_add_u32 v%d, s%d, v%d' % (ad, T0, tid))
    a.e('v_lshlrev_b32 v%d, 2, v%d' % (ad, ad))
    a.e('v_add_u32 v%d, %d, v%d' % (ad, WS_CS1, ad))
    a.e('v_cmp_gt_u32 vcc, 224, v%d' % tid)
    a.e('v_cndmask_b32 v%d, v%d, v%d, vcc' % (ad, t2, ad))
    for kg in range(8):
        a.e('s_mov_b32 s%d, %d' % (T0, kg * DFF * 4))
        a.e('buffer_load_dword v%d, v%d, s[%d:%d], s%d offen' % (cb + kg, ad, S_X0, S_X0 + 3, T0))
    a.e('s_waitcnt vmcnt(8)')
    mean = F.alloc(); m2 = F.alloc()
    a.e('v_add_f32 v%d, v%d, v%d' % (mean, sb, sb + 2))
    for k in range(2, 16): a.e('v_add_f32 v%d, v%d, v%d' % (mean, mean, sb + 2 * k))
    a.e('v_mul_f32 v%d, 0x3a800000, v%d' % (mean, mean))
    a.e('v_mov_b32 v%d, 0' % m2)
    for k in range(16):
        a.e('v_mul_f32 v%d, 0x3c800000, v%d' % (t3, sb + 2 * k))
        a.e('v_sub_f32 v%d, v%d, v%d' % (t3, t3, mean))
        a.e('v_mul_f32 v%d, v%d, v%d' % (t3, t3, t3))
        a.e('v_mul_f32 v%d, 0x42800000, v%d' % (t3, t3))
        a.e('v_add_f32 v%d, v%d, v%d' % (t3, t3, sb + 2 * k + 1))
        a.e('v_add_f32 v%d, v%d, v%d' % (m2, m2, t3))
    a.e('v_mul_f32 v%d, 0x3a800000, v%d' % (m2, m2))
    round_bf16(a, mean)
    round_bf16(a, m2)
    a.e('v_add_f32 v%d, 0x3727c5ac, v%d' % (m2, m2))
    round_bf16(a, m2)
    a.e('v_sqrt_f32 v%d, v%d' % (m2, m2))
    round_bf16(a, m2)
    a.e('v_rcp_f32 v%d, v%d' % (m2, m2))
    mr = F.alloc(2, 2)
    a.e('v_mov_b32 v%d, v%d' % (mr, mean))
    a.e('v_mov_b32 v%d, v%d' % (mr + 1, m2))
    a.e('v_lshlrev_b32 v%d, 3, v%d' % (ad, tid))
    a.e('v_add_u32 v%d, %d, v%d' % (ad, LDS_MR, ad))
    a.e('v_cmp_gt_u32 vcc, 128, v%d' % tid)
    a.e('s_and_saveexec_b64 s[66:67], vcc')
    lab = a.newlabel('nomr')
    a.e('s_cbranch_execz %s' % lab)
    a.e('ds_write_b64 v%d, %s offset:%d' % (ad, vr(mr, 2), 0))
    a.label(lab)
    a.e('s_mov_b64 exec, s[66:67]')
    a.e('s_waitcnt vmcnt(0)')
    for kg in range(1, 8): a.e('v_add_f32 v%d, v%d, v%d' % (cb, cb, cb + kg))
    a.e('v_lshlrev_b32 v%d, 2, v%d' % (ad, tid))
    a.e('v_add_u32 v%d, %d, v%d' % (ad, LDS_CS, ad))
    a.e('ds_write_b32 v%d, v%d' % (ad, cb))
    a.e('s_waitcnt lgkmcnt(0)')
    C.mainloop()
    stamp(a, 1, st)
    acc = C.acc
    RS = 464
    EP = C.STAGE
    assert C.last_slot == 0 and EP + 128 * RS <= 3 * C.STAGE
    F = RegAlloc(C.frag0, C.frag_end)
    vm, vg, wa, ma, ca = F.alloc(), F.alloc(), F.alloc(), F.alloc(), F.alloc()
    a.e('v_and_b32 v%d, 15, v0' % vm)
    a.e('v_lshrrev_b32 v%d, 4, v0' % vg)
    a.e('s_lshl_b32 s%d, s%d, 6' % (T0, S_WM))
    a.e('v_add_u32 v%d, s%d, v%d' % (wa, T0, vm))
    a.e('v_lshlrev_b32 v%d, 3, v%d' % (ma, wa))
    a.e('v_add_u32 v%d, %d, v%d' % (ma, LDS_MR, ma))
    a.e('v_mul_u32_u24 v%d, %d, v%d' % (wa, RS, wa))
    a.e('v_lshl_add_u32 v%d, v%d, 3, v%d' % (wa, vg, wa))
    a.e('s_lshl_b32 s%d, s%d, 5' % (T0, S_WN))
    a.e('s_add_u32 s%d, s%d, %d' % (T0, T0, EP))
    a.e('v_add_u32 v%d, s%d, v%d' % (wa, T0, wa))
    a.e('v_lshlrev_b32 v%d, 4, v%d' % (ca, vg))
    a.e('s_lshl_b32 s%d, s%d, 6' % (T0, S_WN))
    a.e('s_add_u32 s%d, s%d, %d' % (T0, T0, LDS_CS))
    a.e('v_add_u32 v%d, s%d, v%d' % (ca, T0, ca))
    mr = [F.alloc(2, 2) for _ in range(4)]
    cs = [F.alloc(4, 4) for _ in range(7)]
    for i in range(4):
        a.e('ds_read_b64 %s, v%d offset:%d' % (vr(mr[i], 2), ma, i * 128))
    for j in range(7):
        col, _ = C.ntile_col(j)
        a.e('ds_read_b128 %s, v%d offset:%d' % (vr(cs[j], 4), ca, col * 4))
    a.e('s_waitcnt lgkmcnt(0)')
    for i in range(4):
        for j in range(7):
            b = acc[i][j]; col, _ = C.ntile_col(j)
            for r in range(4):
                a.e('v_fma_f32 v%d, -v%d, v%d, v%d' % (b + r, mr[i], cs[j] + r, b + r))
            for r in range(4):
                a.e('v_mul_f32 v%d, v%d, v%d' % (b + r, b + r, mr[i] + 1))
            for r in range(4):
                a.e('v_max_f32 v%d, 0, v%d' % (b + r, b + r))
            a.e('v_cvt_pk_bf16_f32 v%d, v%d, v%d' % (b, b, b + 1))
            a.e('v_cvt_pk_bf16_f32 v%d, v%d, v%d' % (b + 1, b + 2, b + 3))
            a.e('ds_write_b64 v%d, %s offset:%d' % (wa, vr(b, 2), i * 16 * RS + col * 2))
    a.e('s_waitcnt lgkmcnt(0)')
    a.e('s_barrier')
    tl = [F.alloc() for _ in range(7)]; tg = [F.alloc() for _ in range(7)]
    u0, l4, q, row, uc = F.alloc(), F.alloc(), F.alloc(), F.alloc(), F.alloc()
    a.e('v_lshrrev_b32 v%d, 2, v0' % u0)
    a.e('v_and_b32 v%d, 3, v0' % l4)
    a.e('v_lshlrev_b32 v%d, 4, v%d' % (l4, l4))
    a.e('s_mul_i32 s%d, s%d, %d' % (T0, S_WAVE, 32 * RS))
    a.e('s_add_u32 s%d, s%d, %d' % (T0, T0, EP))
    a.e('s_mul_i32 s%d, s%d, %d' % (T1, S_WAVE, 32 * DFF * 2))
    a.e('s_mov_b32 s%d, %d' % (T2, DFF * 2))
    for p in range(7):
        a.e('v_add_u32 v%d, %d, v%d' % (q, p * 16, u0))
        a.e('v_mul_u32_u24 v%d, %d, v%d' % (row, 65536 // 7 + 1, q))
        a.e('v_lshrrev_b32 v%d, 16, v%d' % (row, row))
        a.e('v_mul_u32_u24 v%d, 7, v%d' % (uc, row))
        a.e('v_sub_u32 v%d, v%d, v%d' % (uc, q, uc))
        a.e('v_lshl_add_u32 v%d, v%d, 6, v%d' % (uc, uc, l4))
        a.e('v_mul_u32_u24 v%d, %d, v%d' % (tl[p], RS, row))
        a.e('v_add3_u32 v%d, v%d, v%d, s%d' % (tl[p], tl[p], uc, T0))
        a.e('v_mul_lo_u32 v%d, v%d, s%d' % (tg[p], row, T2))
        a.e('v_add3_u32 v%d, v%d, v%d, s%d' % (tg[p], tg[p], uc, T1))
    lst = [(p, qq) for qq in range(2) for p in range(7)]
    d0 = acc[0][0]
    for n, (p, qq) in enumerate(lst):
        a.e('ds_read_b128 %s, v%d offset:%d' % (vr(d0 + 4 * n, 4), tl[p], qq * 16 * RS))
    for n, (p, qq) in enumerate(lst):
        a.e('s_waitcnt lgkmcnt(%d)' % (13 - n))
        a.e('s_mov_b32 s%d, %d' % (T3, qq * 16 * DFF * 2))
        a.e('buffer_store_dwordx4 %s, v%d, s[%d:%d], s%d offen' % (vr(d0 + 4 * n, 4), tg[p], S_X1, S_X1 + 3, T3))
    stamp(a, 2, st)
    stamp_store(a, 3, st, 3, F.alloc(4, 4))
    a.e('s_endpgm')
    a.label('%s_loader' % name)
    C.loader()
    a.label('%s_done' % name)
    a.e('s_endpgm')
    return dict(lds=LDS_TOTAL, vgpr=256, grid=256, block=512)

HEADER = open('sequential_preLN__linear_kernel_hedgehog__dense_activation_relu__prompt.s.ref').read().split('; Override')[0]

def build(path, st=False):
    body = Asm()
    ks = []
    ks.append(('hh_ln1_kernel', gen_k0(body, 'hh_ln1_kernel', st)))
    ks.append(('hh_qkv_kernel', gen_k1(body, 'hh_qkv_kernel', st)))
    ks.append(('hh_wo_kernel', gen_res_gemm(body, 'hh_wo_kernel', st, 2, WS_O, D, P_WO, P_X, 0, P_WS, WS_H, True)))
    ks.append(('hh_ff1_kernel', gen_k3(body, 'hh_ff1_kernel', st)))
    ks.append(('hh_ff2_kernel', gen_res_gemm(body, 'hh_ff2_kernel', st, 4, WS_H1, DFF, P_W2, P_WS, WS_H, P_OUT, 0, False)))
    hdr = HEADER
    for n, k in ks:
        hdr += '; @launch kernel=%s grid=(%d,1,1) block=(%d,1,1) lds=%d\n' % (n, k['grid'], k['block'], k['lds'])
    txt = hdr + '.amdgcn_target "amdgcn-amd-amdhsa--gfx950"\n.text\n' + body.text() + '.section .rodata,"a"\n'
    for n, k in ks: txt += kernel_desc(n, k['vgpr'])
    open(path, 'w').write(txt)

if __name__ == '__main__':
    build('p_st.s', True)
    build('p.s', False)
```
